```python
import torch

def _softmax(x, axis=-1):
    return torch.softmax(x, dim=axis)
def _gelu(x):
    return torch.nn.functional.gelu(x, approximate="tanh")
def _silu(x):
    return torch.nn.functional.silu(x)
def _sigmoid(x):
    return torch.sigmoid(x)
def _layernorm(x, axis=-1, eps=1e-5):
    m = x.mean(dim=axis, keepdim=True)
    v = x.var(dim=axis, keepdim=True, unbiased=False)
    return (x - m) / torch.sqrt(v + eps)
def _scatter_add(tgt, idx, src, axis=0):
    return tgt.clone().index_add_(axis, idx, src)
def _segment_sum(src, seg, n):
    out = torch.zeros((n,) + src.shape[1:], dtype=src.dtype)
    return out.index_add_(0, seg, src)
def _pad(x, pw):
    flat = tuple(v for pair in reversed(pw) for v in pair)
    return torch.nn.functional.pad(x, flat)

kernel_name = 'concat_heads__gqa_block_cached__gqa_block_cached__decode'

def setup_inputs():

    _w = (lambda a: (lambda t: t.to(torch.bfloat16) if t.is_floating_point() else t)(torch.as_tensor(a)))
    def _A_setup():
        B, Sq, D = 1, 1, 512
        Hq, Hkv, Sk, Dh = 32, 8, 65536, 128
        assert Hq % Hkv == 0, (Hq, Hkv)
        return {
            "x": _w((lambda *s: torch.randn(*s, dtype=torch.bfloat16) * 0.8)(B, Sq, D)),
            "k_cache": _w((lambda *s: torch.randn(*s, dtype=torch.bfloat16) * 1.6)(B, Hkv, Sk, Dh)),
            "v_cache": _w((lambda *s: torch.randn(*s, dtype=torch.bfloat16) * 0.2)(B, Hkv, Sk, Dh)),
            "wq": _w((lambda *s: torch.randn(*s, dtype=torch.bfloat16) * 1.6)(D, Hq * Dh) * (D ** -0.5)),
            "wo": _w((lambda *s: torch.randn(*s, dtype=torch.bfloat16) * 0.2)(Hq * Dh, D) * ((Hq * Dh) ** -0.5)),
        }
    _A_in = _A_setup()

    def _B_setup():
        B, Sq, D = 1, 1, 512
        Hq, Hkv, Sk, Dh = 32, 8, 65536, 128
        assert Hq % Hkv == 0, (Hq, Hkv)
        return {
            "x": _w((lambda *s: torch.randn(*s, dtype=torch.bfloat16) * 0.8)(B, Sq, D)),
            "k_cache": _w((lambda *s: torch.randn(*s, dtype=torch.bfloat16) * 1.6)(B, Hkv, Sk, Dh)),
            "v_cache": _w((lambda *s: torch.randn(*s, dtype=torch.bfloat16) * 0.2)(B, Hkv, Sk, Dh)),
            "wq": _w((lambda *s: torch.randn(*s, dtype=torch.bfloat16) * 1.6)(D, Hq * Dh) * (D ** -0.5)),
            "wo": _w((lambda *s: torch.randn(*s, dtype=torch.bfloat16) * 0.2)(Hq * Dh, D) * ((Hq * Dh) ** -0.5)),
        }
    _B_in = _B_setup()

    return {
        "A_x": _A_in["x"],
        "A_k_cache": _A_in["k_cache"],
        "A_v_cache": _A_in["v_cache"],
        "A_wq": _A_in["wq"],
        "A_wo": _A_in["wo"],
        "B_x": _B_in["x"],
        "B_k_cache": _B_in["k_cache"],
        "B_v_cache": _B_in["v_cache"],
        "B_wq": _B_in["wq"],
        "B_wo": _B_in["wo"],
    }

def reference(A_x, A_k_cache, A_v_cache, A_wq, A_wo, B_x, B_k_cache, B_v_cache, B_wq, B_wo):
    def _A_ref(x, k_cache, v_cache, wq, wo):
        B, Sq, D = x.shape
        Hq, Dh = 32, 128
        Hkv = k_cache.shape[1]
        rep = Hq // Hkv
        q = (lambda x, *d: x.permute(*d))((x @ wq).reshape(B, Sq, Hq, Dh), 0, 2, 1, 3)
        k = (lambda x, n, axis: torch.repeat_interleave(x, n, dim=axis))(k_cache, rep, axis=1)
        v = (lambda x, n, axis: torch.repeat_interleave(x, n, dim=axis))(v_cache, rep, axis=1)
        scores = torch.einsum("bhqd,bhkd->bhqk", q, k) * (Dh ** -0.5)
        p = _softmax(scores, axis=-1)
        o = torch.einsum("bhqk,bhkd->bhqd", p, v)
        return (lambda x, *d: x.permute(*d))(o, 0, 2, 1, 3).reshape(B, Sq, Hq * Dh) @ wo

    def _B_ref(x, k_cache, v_cache, wq, wo):
        B, Sq, D = x.shape
        Hq, Dh = 32, 128
        Hkv = k_cache.shape[1]
        rep = Hq // Hkv
        q = (lambda x, *d: x.permute(*d))((x @ wq).reshape(B, Sq, Hq, Dh), 0, 2, 1, 3)
        k = (lambda x, n, axis: torch.repeat_interleave(x, n, dim=axis))(k_cache, rep, axis=1)
        v = (lambda x, n, axis: torch.repeat_interleave(x, n, dim=axis))(v_cache, rep, axis=1)
        scores = torch.einsum("bhqd,bhkd->bhqk", q, k) * (Dh ** -0.5)
        p = _softmax(scores, axis=-1)
        o = torch.einsum("bhqk,bhkd->bhqd", p, v)
        return (lambda x, *d: x.permute(*d))(o, 0, 2, 1, 3).reshape(B, Sq, Hq * Dh) @ wo

    a = _A_ref(A_x, A_k_cache, A_v_cache, A_wq, A_wo)
    b = _B_ref(B_x, B_k_cache, B_v_cache, B_wq, B_wo)
    return torch.concatenate([a, b], axis=-1)
```

```python
import sys, math
from build import build, KN

WS_QP   = 0x0
WS_PART = 0x10000
WS_OUTP = 0x200000
WS_SIZE = 553650176
CSCALE = 1.4426950408889634 / math.sqrt(128.0)
import struct
def f2u(x): return struct.unpack("<I", struct.pack("<f", x))[0]

class E:
    def __init__(s): s.L = []
    def __call__(s, t):
        for line in t.split("\n"):
            s.L.append("    " + line.strip() if not line.strip().endswith(":") else line.strip())
    def raw(s, t): s.L.append(t)
    def text(s): return "\n".join(s.L) + "\n"

def kd(name, nv, acc=None, ns=96):
    acc = acc if acc is not None else min(256, (nv + 3) // 4 * 4)
    return f""".section .rodata,"a"
.p2align 6
.amdhsa_kernel {name}
  .amdhsa_next_free_vgpr {nv}
  .amdhsa_next_free_sgpr {ns}
  .amdhsa_accum_offset {acc}
  .amdhsa_group_segment_fixed_size 0
  .amdhsa_kernarg_size 104
  .amdhsa_user_sgpr_count 2
  .amdhsa_user_sgpr_kernarg_segment_ptr 1
  .amdhsa_system_sgpr_workgroup_id_x 1
.end_amdhsa_kernel
"""
def head(A, name):
    A.raw(f".text\n.globl {name}\n.p2align 8\n.type {name},@function\n{name}:")
def srd(A, r, lo, hi, nrec, off=None):
    if off is None:
        A(f"s_mov_b32 s{r}, s{lo}\ns_and_b32 s{r+1}, s{hi}, 0xffff")
    else:
        A(f"s_add_u32 s{r}, s{lo}, {off}\ns_addc_u32 s{r+1}, s{hi}, 0\ns_and_b32 s{r+1}, s{r+1}, 0xffff")
    A(f"s_mov_b32 s{r+2}, {nrec}\ns_mov_b32 s{r+3}, 0x20000")
DPPF = "row_mask:0xf bank_mask:0xf"
def decode(A, lab):
    A(f"s_cmp_ge_u32 s2, 256\ns_cbranch_scc1 {lab}")
    A("s_lshr_b32 s3, s2, 4\ns_and_b32 s4, s2, 15\ns_lshr_b32 s5, s3, 3\ns_and_b32 s6, s3, 7")
    A("s_mul_i32 s7, s5, 40\ns_add_u32 s8, s0, s7\ns_addc_u32 s9, s1, 0")
    A("v_and_b32 v1, 63, v0\nv_lshrrev_b32 v2, 6, v0\ns_nop 0\nv_readfirstlane_b32 s20, v2")

def k_q(A):
    n = "q_kernel"; head(A, n); decode(A, "Lq_end")
    A("s_load_dwordx2 s[10:11], s[8:9], 0\ns_load_dwordx2 s[12:13], s[8:9], 24\ns_load_dwordx2 s[14:15], s[0:1], 96")
    A("s_lshr_b32 s16, s4, 3\ns_and_b32 s17, s4, 7")
    A("s_lshl_b32 s18, s16, 8\ns_lshl_b32 s19, s20, 6\ns_add_u32 s18, s18, s19")
    A("v_lshrrev_b32 v2, 3, v1\nv_lshlrev_b32 v2, 3, v2\nv_add_u32 v2, s18, v2")
    A("s_lshl_b32 s19, s6, 10\ns_lshl_b32 s21, s17, 7\ns_add_u32 s19, s19, s21")
    A("v_and_b32 v3, 7, v1\nv_lshlrev_b32 v3, 4, v3\nv_add_u32 v3, s19, v3")
    A("v_lshl_add_u32 v3, v2, 13, v3")
    A("v_lshlrev_b32 v2, 1, v2")
    A("s_waitcnt lgkmcnt(0)")
    srd(A, 24, 10, 11, 1024); srd(A, 28, 12, 13, 4194304); srd(A, 32, 14, 15, WS_SIZE)
    A("buffer_load_dwordx4 v[4:7], v2, s[24:27], 0 offen")
    for i in range(8):
        A(f"s_mov_b32 s36, {i*8192}\nbuffer_load_dwordx4 v[{8+4*i}:{11+4*i}], v3, s[28:31], s36 offen nt")
    for c in range(8): A(f"v_mov_b32 v{40+c}, 0")
    for i in range(8):
        A(f"s_waitcnt vmcnt({7-i})")
        if i % 2 == 0: A(f"v_lshlrev_b32 v48, 16, v{4+i//2}")
        else: A(f"v_and_b32 v48, 0xffff0000, v{4+i//2}")
        for c in range(8):
            r = 8 + 4*i + c//2
            if c % 2 == 0: A(f"v_lshlrev_b32 v49, 16, v{r}")
            else: A(f"v_and_b32 v49, 0xffff0000, v{r}")
            A(f"v_fmac_f32 v{40+c}, v48, v49")
    A("s_nop 1")
    for c in range(4): A(f"v_permlane32_swap_b32 v{40+c}, v{44+c}")
    for c in range(4): A(f"v_add_f32 v{40+c}, v{40+c}, v{44+c}")
    A("s_nop 1")
    for c in range(2): A(f"v_permlane16_swap_b32 v{40+c}, v{42+c}")
    for c in range(2): A(f"v_add_f32 v{40+c}, v{40+c}, v{42+c}")
    A("s_nop 1")
    for c in range(2): A(f"v_add_f32_dpp v{42+c}, v{40+c}, v{40+c} row_ror:8 {DPPF}")
    A("v_and_b32 v2, 7, v1\nv_lshlrev_b32 v2, 5, v2\nv_lshrrev_b32 v3, 4, v1\nv_lshl_add_u32 v2, v3, 3, v2")
    A("s_lshl_b32 s36, s20, 8\nv_add_u32 v2, s36, v2")
    A("ds_write_b64 v2, v[42:43]\ns_waitcnt lgkmcnt(0)\ns_barrier")
    A("s_cmp_lg_u32 s20, 0\ns_cbranch_scc1 Lq_end")
    A("v_lshlrev_b32 v2, 2, v1")
    for w in range(4): A(f"ds_read_b32 v{4+w}, v2 offset:{w*256}")
    A(f"s_lshl_b32 s36, s3, 12\ns_lshl_b32 s37, s16, 11\ns_add_u32 s36, s36, s37\ns_lshl_b32 s37, s17, 8\ns_add_u32 s36, s36, s37\ns_add_u32 s36, s36, {WS_QP}")
    A("s_waitcnt lgkmcnt(0)\nv_add_f32 v4, v4, v5\nv_add_f32 v6, v6, v7\nv_add_f32 v4, v4, v6")
    A("buffer_store_dword v4, v2, s[32:35], s36 offen")
    A("Lq_end:\ns_endpgm")
    return kd(n, 56)

def k_main(A, D=1, T=32, pol="nt", wave_contig=False):
    n = "main_kernel"; head(A, n); decode(A, "Lm_end")
    NL = T // 4
    N = 2 * NL * D
    assert N <= 64
    A("s_load_dwordx4 s[12:15], s[8:9], 8\ns_load_dwordx2 s[10:11], s[0:1], 96")
    A("v_and_b32 v2, 3, v1\nv_lshlrev_b32 v2, 4, v2\nv_lshrrev_b32 v4, 4, v1\nv_lshl_add_u32 v2, v4, 6, v2\nv_bfe_u32 v4, v1, 2, 2\nv_lshl_add_u32 v2, v4, 8, v2")
    A("v_lshlrev_b32 v3, 4, v1")
    A("s_lshl_b32 s16, s6, 24\ns_lshl_b32 s17, s4, 20\ns_add_u32 s16, s16, s17")
    A("s_waitcnt lgkmcnt(0)")
    srd(A, 24, 12, 13, 1 << 20, "s16"); srd(A, 28, 14, 15, 1 << 20, "s16"); srd(A, 32, 10, 11, WS_SIZE)
    TB = T * 256
    ntiles = 4096 // T // 4
    if wave_contig:
        A(f"s_mul_i32 s21, s20, {ntiles*TB}"); step = TB
    else:
        A(f"s_mul_i32 s21, s20, {TB}"); step = 4 * TB
    A(f"s_lshl_b32 s36, s3, 12\ns_add_u32 s36, s36, {WS_QP}")
    A("v_lshlrev_b32 v4, 1, v2")
    A("buffer_load_dwordx4 v[16:19], v4, s[32:35], s36 offen\nbuffer_load_dwordx4 v[20:23], v4, s[32:35], s36 offen offset:16")
    A("buffer_load_dwordx4 v[24:27], v4, s[32:35], s36 offen offset:2048\nbuffer_load_dwordx4 v[28:31], v4, s[32:35], s36 offen offset:2064")
    def slot(t, kv, j): return ((t % D) * 2 + kv) * NL + j
    def ld(t, kv, j):
        s = slot(t, kv, j)
        q, jj = divmod(j, 4)
        A(f"buffer_load_dwordx4 a[{4*s}:{4*s+3}], v{2+kv}, s[{24+4*kv}:{27+4*kv}], s{40+q} offen offset:{jj*1024} {pol}")
    def setoff():
        for q in range(NL // 4): A(f"s_add_u32 s{40+q}, s21, {q*4096}")
        A(f"s_add_u32 s21, s21, {step}")
    for t in range(D):
        setoff()
        for kv in range(2):
            for j in range(NL): ld(t, kv, j)
    QOP = 4; M0, M1 = 8, 9; MC, LS, AL, TM, TMP = 10, 11, 12, 13, 14
    O = 32; DS = 40; S = DS + 4 * NL; PA = S + NL; PA += PA % 2
    nv = PA + 2 * NL
    A("v_and_b32 v15, 3, v1")
    A(f"v_mov_b32 v{M0}, 0\nv_mov_b32 v{M1}, 0\nv_mov_b32 v{TM}, 0xffff\nv_mov_b32 v{TMP}, 0xffff0000")
    for e, (dst, src) in enumerate(((M0, TM), (M0, TMP), (M1, TM), (M1, TMP))):
        A(f"v_cmp_eq_u32 vcc, {e}, v15\ns_nop 1\nv_cndmask_b32 v{dst}, v{dst}, v{src}, vcc")
    for r in range(8): A(f"v_mov_b32 v{O+r}, 0")
    A(f"v_mov_b32 v{MC}, 0xff800000\nv_mov_b32 v{LS}, 0")
    A(f"s_mov_b32 s38, {hex(f2u(CSCALE))}")
    A(f"s_waitcnt vmcnt({N})")
    for r in range(8): A(f"v_add_f32 v{16+r}, v{16+r}, v{24+r}")
    for r in range(4): A(f"v_cvt_pk_bf16_f32 v{QOP+r}, v{16+2*r}, v{17+2*r}")
    A("s_nop 1")
    def tile(t, reload):
        if reload: setoff()
        for j in range(NL):
            s = slot(t, 0, j)
            A(f"s_waitcnt vmcnt({N-1 if reload else max(0, rem[0]-1)})"); rem[0] -= 0 if reload else 1
            A(f"v_mfma_f32_16x16x32_bf16 v[{DS+4*j}:{DS+4*j+3}], a[{4*s}:{4*s+3}], v[{QOP}:{QOP+3}], 0")
            if reload: ld(t, 0, j)
        A("s_nop 7")
        for j in range(NL): A(f"v_mov_b32_dpp v{S+j}, v{DS+4*j} quad_perm:[0,0,0,0] {DPPF}")
        for r in range(1, 4):
            for j in range(NL): A(f"v_add_f32_dpp v{S+j}, v{DS+4*j+r}, v{S+j} quad_perm:[{r},{r},{r},{r}] {DPPF}")
        A(f"v_max3_f32 v{TM}, v{S}, v{S+1}, v{S+2}")
        for j in range(3, NL - 1, 2): A(f"v_max3_f32 v{TM}, v{TM}, v{S+j}, v{S+j+1}")
        A(f"v_max_f32 v{TM}, v{TM}, v{S+NL-1}")
        A(f"v_mov_b32 v{TMP}, v{TM}\ns_nop 1\nv_permlane16_swap_b32 v{TMP}, v{TM}\nv_max_f32 v{TM}, v{TM}, v{TMP}")
        A(f"v_mov_b32 v{TMP}, v{TM}\ns_nop 1\nv_permlane32_swap_b32 v{TMP}, v{TM}\nv_max_f32 v{TM}, v{TM}, v{TMP}")
        A(f"v_mul_f32 v{TM}, s38, v{TM}\nv_max_f32 v{TM}, v{TM}, v{MC}")
        A(f"v_sub_f32 v{AL}, v{MC}, v{TM}\nv_exp_f32 v{AL}, v{AL}\nv_mov_b32 v{MC}, v{TM}")
        for j in range(NL): A(f"v_fma_f32 v{S+j}, v{S+j}, s38, -v{MC}")
        for j in range(NL): A(f"v_exp_f32 v{S+j}, v{S+j}")
        A(f"v_mul_f32 v{LS}, v{LS}, v{AL}")
        for r in range(4): A(f"v_mov_b32_dpp v{TMP}, v{AL} row_newbcast:{4*r} row_mask:{hex(1<<r)} bank_mask:0xf\ns_nop 1")
        for j in range(NL): A(f"v_add_f32 v{LS}, v{LS}, v{S+j}")
        for r in range(8): A(f"v_mul_f32 v{O+r}, v{O+r}, v{TMP}")
        for j in range(NL): A(f"v_cvt_pk_bf16_f32 v{S+j}, v{S+j}, v{S+j}")
        for j in range(NL): A(f"v_and_b32 v{PA+2*j}, v{S+j}, v{M0}\nv_and_b32 v{PA+2*j+1}, v{S+j}, v{M1}")
        A("s_nop 1")
        for j in range(NL):
            s = slot(t, 1, j)
            A(f"s_waitcnt vmcnt({N-1 if reload else max(0, rem[0]-1)})"); rem[0] -= 0 if reload else 1
            A(f"v_mfma_f32_16x16x16_bf16 v[{O}:{O+3}], v[{PA+2*j}:{PA+2*j+1}], a[{4*s}:{4*s+1}], v[{O}:{O+3}]")
            A(f"v_mfma_f32_16x16x16_bf16 v[{O+4}:{O+7}], v[{PA+2*j}:{PA+2*j+1}], a[{4*s+2}:{4*s+3}], v[{O+4}:{O+7}]")
            if reload: ld(t, 1, j)
    rem = [N]
    assert ntiles % D == 0
    A(f"s_mov_b32 s37, {ntiles // D - 1}")
    A("Lm_loop:")
    for t in range(D): tile(t, True)
    A("s_sub_u32 s37, s37, 1\ns_cmp_lg_u32 s37, 0\ns_cbranch_scc1 Lm_loop")
    for t in range(D): tile(t, False)
    A(f"v_mov_b32 v{TMP}, v{LS}\ns_nop 1\nv_permlane16_swap_b32 v{TMP}, v{LS}\nv_add_f32 v{LS}, v{LS}, v{TMP}")
    A(f"v_mov_b32 v{TMP}, v{LS}\ns_nop 1\nv_permlane32_swap_b32 v{TMP}, v{LS}\nv_add_f32 v{LS}, v{LS}, v{TMP}")
    A("v_lshlrev_b32 v16, 5, v0")
    A(f"v_bfe_u32 v17, v1, 2, 2\nv_lshlrev_b32 v17, 5, v17\ns_lshl_b32 s36, s20, 3\nv_add_u32 v17, s36, v17")
    A(f"ds_write_b64 v17, v[{MC}:{MC+1}] offset:8192")
    A(f"ds_write_b128 v16, v[{O}:{O+3}]\nds_write_b128 v16, v[{O+4}:{O+7}] offset:16")
    A("s_waitcnt lgkmcnt(0)\ns_barrier")
    A("s_lshl_b32 s36, s20, 5\nv_mov_b32 v17, s36\nv_lshlrev_b32 v16, 3, v0")
    A("ds_read_b128 v[20:23], v17 offset:8192\nds_read_b128 v[24:27], v17 offset:8208")
    for w in range(4): A(f"ds_read_b64 v[{32+2*w}:{33+2*w}], v16 offset:{w*2048}")
    A("s_waitcnt lgkmcnt(4)")
    A("v_max3_f32 v18, v20, v22, v24\nv_max_f32 v18, v18, v26")
    for w in range(4): A(f"v_sub_f32 v{20+2*w}, v{20+2*w}, v18")
    for w in range(4): A(f"v_exp_f32 v{20+2*w}, v{20+2*w}")
    A("s_waitcnt lgkmcnt(0)")
    A("v_mul_f32 v19, v20, v21\nv_mul_f32 v28, v20, v32\nv_mul_f32 v29, v20, v33")
    for w in range(1, 4): A(f"v_fmac_f32 v19, v{20+2*w}, v{21+2*w}\nv_fmac_f32 v28, v{20+2*w}, v{32+2*w}\nv_fmac_f32 v29, v{20+2*w}, v{33+2*w}")
    A(f"s_lshl_b32 s36, s2, 12\ns_add_u32 s36, s36, {WS_PART}")
    A("buffer_store_dwordx2 v[28:29], v16, s[32:35], s36 offen")
    A("s_lshl_b32 s37, s20, 3\nv_mov_b32 v17, s37")
    A("v_cmp_eq_u32 vcc, 0, v1\ns_and_saveexec_b64 s[44:45], vcc")
    A("buffer_store_dwordx2 v[18:19], v17, s[32:35], s36 offen offset:2048")
    A("Lm_end:\ns_endpgm")
    acc = (nv + 3) // 4 * 4
    return kd(n, acc + 4 * N, acc)

def allred(A, op, regs, tmp, steps):
    for st in steps:
        if st.startswith("ror"):
            A("s_nop 1")
            for r in regs: A(f"{op}_dpp v{r}, v{r}, v{r} row_ror:{st[3:]} {DPPF}")
        else:
            for r in regs:
                A(f"v_mov_b32 v{tmp}, v{r}\ns_nop 1\nv_permlane{st}_swap_b32 v{tmp}, v{r}\n{op} v{r}, v{r}, v{tmp}")

def k_comb(A):
    n = "comb_kernel"; head(A, n); decode(A, "Lc_end")
    A("s_load_dwordx2 s[12:13], s[8:9], 32\ns_load_dwordx2 s[10:11], s[0:1], 96")
    A("v_lshrrev_b32 v2, 2, v1\nv_lshlrev_b32 v2, 12, v2\nv_and_b32 v3, 3, v1\nv_lshl_add_u32 v3, v3, 5, v2")
    A(f"s_lshl_b32 s16, s3, 16\ns_add_u32 s16, s16, {WS_PART}")
    A("s_lshl_b32 s17, s4, 7\ns_add_u32 s17, s17, s16")
    A("s_lshr_b32 s18, s4, 2\ns_lshl_b32 s18, s18, 3\ns_add_u32 s18, s18, s16")
    A("v_lshrrev_b32 v4, 4, v1\nv_lshlrev_b32 v4, 11, v4\nv_and_b32 v5, 15, v1\nv_lshl_add_u32 v4, v5, 4, v4")
    A("s_lshl_b32 s19, s6, 19\ns_lshl_b32 s21, s4, 15\ns_add_u32 s19, s19, s21\ns_lshl_b32 s21, s20, 8\ns_add_u32 s19, s19, s21")
    A("s_waitcnt lgkmcnt(0)")
    srd(A, 24, 12, 13, 4194304); srd(A, 32, 10, 11, WS_SIZE)
    A("buffer_load_dwordx2 v[6:7], v2, s[32:35], s18 offen offset:2048")
    A("buffer_load_dwordx4 v[8:11], v3, s[32:35], s17 offen\nbuffer_load_dwordx4 v[12:15], v3, s[32:35], s17 offen offset:16")
    for p in range(4):
        A(f"s_add_u32 s36, s19, {p*8192}")
        for k in range(2):
            i = p * 2 + k
            A(f"buffer_load_dwordx4 v[{32+4*i}:{35+4*i}], v4, s[24:27], s36 offen offset:{k*1024} nt")
    A("s_waitcnt vmcnt(10)")
    A("v_mov_b32 v16, v6")
    allred(A, "v_max_f32", [16], 17, ["ror4", "ror8", "16", "32"])
    A("v_sub_f32 v6, v6, v16\nv_exp_f32 v6, v6\ns_nop 0\nv_mul_f32 v7, v6, v7")
    allred(A, "v_add_f32", [7], 17, ["ror4", "ror8", "16", "32"])
    A("v_rcp_f32 v7, v7\ns_nop 0\nv_mul_f32 v6, v6, v7")
    A("s_waitcnt vmcnt(8)")
    for e in range(8): A(f"v_mul_f32 v{8+e}, v{8+e}, v6")
    A("s_nop 1")
    for c in range(4): A(f"v_permlane32_swap_b32 v{8+c}, v{12+c}")
    for c in range(4): A(f"v_add_f32 v{8+c}, v{8+c}, v{12+c}")
    A("s_nop 1")
    for c in range(2): A(f"v_permlane16_swap_b32 v{8+c}, v{10+c}")
    for c in range(2): A(f"v_add_f32 v{8+c}, v{8+c}, v{10+c}")
    allred(A, "v_add_f32", [8, 9], 17, ["ror4", "ror8"])
    for c in range(8): A(f"v_mov_b32 v{20+c}, 0")
    for p in range(4):
        for k in range(2):
            i = p * 2 + k
            A(f"s_waitcnt vmcnt({7-i})")
            for c in range(8):
                r = 32 + 4 * i + c // 2
                if c % 2 == 0: A(f"v_lshlrev_b32 v{64+c}, 16, v{r}")
                else: A(f"v_and_b32 v{64+c}, 0xffff0000, v{r}")
            A("s_nop 1")
            for c in range(8):
                A(f"v_fmac_f32_dpp v{20+c}, v{8+k}, v{64+c} quad_perm:[{p},{p},{p},{p}] {DPPF}")
    A("s_nop 1")
    for c in range(4): A(f"v_permlane32_swap_b32 v{20+c}, v{24+c}")
    for c in range(4): A(f"v_add_f32 v{20+c}, v{20+c}, v{24+c}")
    A("s_nop 1")
    for c in range(2): A(f"v_permlane16_swap_b32 v{20+c}, v{22+c}")
    for c in range(2): A(f"v_add_f32 v{20+c}, v{20+c}, v{22+c}")
    A("v_lshrrev_b32 v4, 4, v1\nv_lshlrev_b32 v4, 3, v4\nv_and_b32 v5, 15, v1\nv_lshl_add_u32 v4, v5, 5, v4")
    A(f"s_lshl_b32 s36, s2, 11\ns_lshl_b32 s37, s20, 9\ns_add_u32 s36, s36, s37\ns_add_u32 s36, s36, {WS_OUTP}")
    A("buffer_store_dwordx2 v[20:21], v4, s[32:35], s36 offen")
    A("Lc_end:\ns_endpgm")
    return kd(n, 72)

def k_fin(A):
    n = "fin_kernel"; head(A, n)
    A(f"s_cmp_ge_u32 s2, 256\ns_cbranch_scc1 Lf_end")
    A("s_load_dwordx2 s[12:13], s[0:1], 80\ns_load_dwordx2 s[10:11], s[0:1], 96")
    A("s_lshr_b32 s5, s2, 7\ns_and_b32 s6, s2, 127")
    A(f"s_lshl_b32 s16, s5, 18\ns_lshl_b32 s17, s6, 4\ns_add_u32 s16, s16, s17\ns_add_u32 s16, s16, {WS_OUTP}\ns_add_u32 s17, s16, {64*2048}")
    A("v_lshlrev_b32 v2, 11, v0")
    A("s_waitcnt lgkmcnt(0)")
    srd(A, 24, 12, 13, 2048); srd(A, 32, 10, 11, WS_SIZE)
    A("buffer_load_dwordx4 v[4:7], v2, s[32:35], s16 offen\nbuffer_load_dwordx4 v[8:11], v2, s[32:35], s17 offen")
    A("v_lshrrev_b32 v3, 4, v0\nv_lshlrev_b32 v3, 1, v3\ns_lshl_b32 s18, s2, 3")
    A("s_waitcnt vmcnt(0)")
    for c in range(4): A(f"v_add_f32 v{4+c}, v{4+c}, v{8+c}")
    A("s_nop 1")
    for c in range(2): A(f"v_permlane32_swap_b32 v{4+c}, v{6+c}")
    for c in range(2): A(f"v_add_f32 v{4+c}, v{4+c}, v{6+c}")
    A("s_nop 1\nv_permlane16_swap_b32 v4, v5\nv_add_f32 v4, v4, v5")
    allred(A, "v_add_f32", [4], 17, ["ror8", "ror4", "ror2", "ror1"])
    A("v_cvt_pk_bf16_f32 v4, v4, v4")
    A("v_and_b32 v5, 15, v0\nv_cmp_eq_u32 vcc, 0, v5\ns_and_saveexec_b64 s[44:45], vcc")
    A("buffer_store_short v4, v3, s[24:27], s18 offen")
    A("Lf_end:\ns_endpgm")
    return kd(n, 24)

def gen(name, **kw):
    A = E()
    A.raw("; @launch kernel=q_kernel grid=(256,1,1) block=(256,1,1) lds=1024")
    A.raw("; @launch kernel=main_kernel grid=(256,1,1) block=(256,1,1) lds=8448")
    A.raw("; @launch kernel=comb_kernel grid=(256,1,1) block=(256,1,1) lds=0")
    A.raw("; @launch kernel=fin_kernel grid=(256,1,1) block=(64,1,1) lds=0")
    A.raw('.amdgcn_target "amdgcn-amd-amdhsa--gfx950"')
    kds = [k_q(A), k_main(A, **kw), k_comb(A), k_fin(A)]
    for k in kds: A.raw(k)
    open(name + ".s", "w").write(A.text())
    return build(name + ".s")
if __name__ == "__main__":
    lines = [gen("v1_d1", D=1), gen("v1_d2", D=2), gen("v1_t16d2", D=2, T=16), gen("v1_d1def", D=1, pol="")]
    open("plan_v1.txt", "w").write("\n".join(lines) + "\n")
    print("\n".join(lines))
```

```python
import sys, math, struct, json
from build import build, KN
from gen_v1 import E, kd, head, srd, f2u, DPPF, CSCALE

WS_EPOCH = 0x10000
WS_FB   = 0x18000
WS_QP   = 0x20000
WS_OUTP = 0x40000
WS_PART = 0x80000
WS_XC   = 0x200000
WS_SIZE = 553650176
TINC = 0x9E3779B9
HDR = open("concat_heads__gqa_block_cached__gqa_block_cached__decode.s.ref").read().split("; Override launch")[0]
P0 = "k0 k1 t0 t1 w0 w1 t2 t3 t4 t5 t6 b0 b1 b2 b3 b4 b5 b6 b7"
PX = "k1 w1 k0 b7 w0 t0 t2 t3 b6 t4 t1 t5 t6 b5 b3 b4 b0 b1 b2 | 40 1 97 81 57 35 4 0 9 17"
PV = "t3 w1 k0 b3 t6 t0 t2 k1 b6 t4 t1 t5 w0 b5 b4 b7 b0 b1 b2 | 40 0 0 96 118 6 14 8 8 12"
P1 = "k0 w1 t1 k1 w0 t0 t2 t3 b3 t4 t6 t5 b2 b4 b1 b0 b6 b5 b7"

def gen(name, perm=PV, b0=8, n0=6, n0last=8, lo=4, n=5, hi=6, up=1.0, dn=-6.0, fb=True, brk=4, pol="nt", stamp=False, codepf=False, touch=False,
        TMO=200000, outsc="", slpg=2, wostep=19, hwid=False, abl='', gdelay=24, probe=None, slpp=4, h2wait=True, diag=None, per=4, rd=8, xd=24, xg=0.75, xb=-3.0, x0=48, h1wait=False, wolate=0, tst=False, local=True, KQ=8, prefill=False, amid=False, wb=0, alast=1, fbend=512, pregather=None, cref=None, layout=1, dirty=0, qsc=False, warm=True, wk=2, pbar=False, asym=False):
    A = E()
    R = 32
    pp = perm.split("|")
    pos = {nm: 8 + i for i, nm in enumerate(pp[0].split())}
    tm = [int(x) for x in pp[1].split()] if len(pp) > 1 else [0] * 10
    srcs = ["w0", "w1"] + [f"b{i}" for i in range(8)]
    xm = {nm: (1 << pos[nm]) | sum(1 << pos[f"t{t}"] for t in range(7) if (tm[i] >> t) & 1) for i, nm in enumerate(srcs)}
    xored = 0
    for v in tm: xored |= v
    assert len(pos) == 19
    gb = sorted([i for i in range(8) if pos[f"b{i}"] >= 24], key=lambda i: pos[f"b{i}"])
    sb = [i for i in range(8) if i not in gb]
    assert len(gb) == 3
    if local: assert gb == [0, 1, 2]
    L_O = 0; L_OA = 12288; L_ML = 24576; L_MLA = 24704; L_Q = 24832; L_QB = 25856; L_OP = 26880
    L_FL = 28928
    LDS = 28992
    A.raw(HDR.rstrip())
    A.raw(f"; @launch grid=(256,1,1) block=(320,1,1) lds={LDS}")
    A.raw('.amdgcn_target "amdgcn-amd-amdhsa--gfx950"')
    head(A, KN)
    rS, rWS, rWQ, rWO, rX, rOUT = 24, 32, 64, 68, 72, 76
    sT = 47
    def st(i):
        if stamp: A(f"s_memrealtime s[{88}:{89}]\ns_waitcnt lgkmcnt(0)\ns_mov_b32 s{48+i}, s88")
    st_ = st
    def ts(i):
        if tst: st_(i)
    nst = [0]
    def stub():
        if warm:
            A(f"L_w{nst[0]}:\ns_cbranch_execz L_w{nst[0]+1}"); nst[0] += 1
        else: A("s_nop 0")
    def bits(dst, src, lst, tmp=6):
        first = True; k = 0
        while k < len(lst):
            i, p = lst[k]; run = 1
            while k + run < len(lst) and lst[k + run] == (i + run, p + run): run += 1
            d = dst if first else tmp
            A(f"s_bfe_u32 s{d}, s{src}, {hex((run << 16) | i)}")
            if p: A(f"s_lshl_b32 s{d}, s{d}, {p}")
            if not first: A(f"s_or_b32 s{dst}, s{dst}, s{tmp}")
            first = False; k += run
    A(f"s_cmp_ge_u32 s2, 256\ns_cbranch_scc1 L_end")
    A("s_lshr_b32 s5, s2, 7\ns_mul_i32 s7, s5, 40\ns_add_u32 s8, s0, s7\ns_addc_u32 s9, s1, 0")
    A("s_load_dwordx2 s[12:13], s[8:9], 0\ns_load_dwordx4 s[16:19], s[8:9], 24")
    A("s_load_dwordx4 s[80:83], s[0:1], 8\ns_load_dwordx4 s[84:87], s[0:1], 48")
    A("s_load_dwordx2 s[10:11], s[0:1], 80\ns_load_dwordx2 s[22:23], s[0:1], 96")
    A("s_and_b32 s3, s2, 7\ns_lshr_b32 s4, s2, 3")
    A("v_lshrrev_b32 v2, 6, v0\nv_and_b32 v1, 63, v0\nv_readfirstlane_b32 s20, v2")
    if stamp: A("s_memrealtime s[88:89]")
    A("s_bfe_u32 s44, s2, 0x10006\ns_and_b32 s45, s4, 7")
    A("s_lshl_b32 s36, s44, 8\ns_lshl_b32 s37, s20, 6\ns_add_u32 s36, s36, s37")
    A("v_and_b32 v4, 56, v1\nv_add_u32 v4, s36, v4")
    A("s_lshl_b32 s37, s3, 10\ns_lshl_b32 s38, s45, 7\ns_add_u32 s37, s37, s38")
    A("v_and_b32 v5, 7, v1\nv_lshlrev_b32 v5, 4, v5\nv_add_u32 v5, s37, v5")
    A("v_lshl_add_u32 v5, v4, 13, v5\nv_lshlrev_b32 v4, 1, v4")
    A("v_lshlrev_b32 v3, 4, v1")
    for r, nrec in ((rX, 1024), (rWQ, 4194304), (rS, 1 << 27), (rWS, WS_SIZE), (rWO, 4194304), (rOUT, 2048)):
        A(f"s_mov_b32 s{r+2}, {nrec}\ns_mov_b32 s{r+3}, 0x20000")
    A("s_waitcnt lgkmcnt(0)")
    if stamp: A("s_mov_b32 s48, s88")
    for r, p in ((rX, 12), (rWQ, 16)): A(f"s_mov_b32 s{r}, s{p}\ns_and_b32 s{r+1}, s{p+1}, 0xffff")
    XR, WR, ACC = 8, 12, 44
    A("s_cmp_eq_u32 s20, 4\ns_cbranch_scc1 L_nold")
    if 'q' not in abl:
        A(f"buffer_load_dwordx4 v[{XR}:{XR+3}], v4, s[{rX}:{rX+3}], 0 offen")
        for i in range(8):
            if i: A(f"s_mov_b32 s36, {i*8192}")
            A(f"buffer_load_dwordx4 v[{WR+4*i}:{WR+3+4*i}], v5, s[{rWQ}:{rWQ+3}], {'s36' if i else '0'} offen {pol}")
    A("L_nold:")
    A(f"s_load_dword s{sT}, s[22:23], {WS_EPOCH}")
    for t in range(4): A(f"s_and_b32 s{81+2*t}, s{81+2*t}, 0xffff")
    A(f"s_mov_b32 s{rS}, s80\ns_mov_b32 s{rS+1}, s81")
    for r, p in ((rWS, 22), (rWO, 18), (rOUT, 10)): A(f"s_mov_b32 s{r}, s{p}\ns_and_b32 s{r+1}, s{p+1}, 0xffff")
    bits(62, 2, [(i, k) for k, i in enumerate(gb)])
    bits(63, 2, [(i, k) for k, i in enumerate(sb)])
    A("s_mov_b32 s21, 0")
    for nm in srcs:
        A(f"s_bitcmp1_b32 s{20 if nm[0] == 'w' else 2}, {nm[1]}\ns_cselect_b32 s6, {hex(xm[nm])}, 0\ns_xor_b32 s21, s21, s6")
    bits(42, 2, [(0, 19), (1, 20), (2, 21), (3, 8), (4, 9), (5, 17), (6, 18)])
    A("s_and_b32 s43, s20, 3\ns_lshl_b32 s43, s43, 15\ns_or_b32 s42, s42, s43")
    m = sum(1 << l for l in range(48) if (l % 12) >> 2 == 2)
    A(f"s_mov_b32 s58, {hex(m & 0xffffffff)}\ns_mov_b32 s59, {hex(m >> 32)}")
    A("s_cmp_eq_u32 s20, 4\ns_cbranch_scc1 L_helper")
    markh = len(A.L)
    A("L_helper:")

    def combine(vML, vOR, offML, offO, mid=None):
        A(f"ds_read_b128 v[16:19], v{vML} offset:{offML}\nds_read_b128 v[20:23], v{vML} offset:{offML+16}")
        for w in range(4): A(f"ds_read_b128 v[{32+4*w}:{35+4*w}], v{vOR} offset:{offO+w*3072}")
        A("s_waitcnt lgkmcnt(4)")
        A("v_max3_f32 v24, v16, v18, v20\nv_max_f32 v24, v24, v22")
        for w in range(4): A(f"v_sub_f32 v{16+2*w}, v{16+2*w}, v24")
        for w in range(4): A(f"v_exp_f32 v{16+2*w}, v{16+2*w}")
        A("v_mul_f32 v25, v16, v17")
        for w in range(1, 4): A(f"v_fmac_f32 v25, v{16+2*w}, v{17+2*w}")
        A("v_rcp_f32 v26, v25\nv_log_f32 v27, v25")
        if mid: mid()
        A("s_waitcnt lgkmcnt(0)")
        for c in range(3): A(f"v_mul_f32 v{28+c}, v16, v{32+c}")
        for w in range(1, 4):
            for c in range(3): A(f"v_fmac_f32 v{28+c}, v{16+2*w}, v{32+4*w+c}")
        A("v_add_f32 v27, v27, v24")
        for c in range(3): A(f"v_mul_f32 v{28+c}, v{28+c}, v26")
        A("v_cndmask_b32 v30, v30, v27, s[58:59]")

    A("v_mov_b32 v14, 0\nv_mov_b32 v15, 0\nv_mov_b32 v8, 1\nv_and_b32 v58, 3, v1\nv_lshlrev_b32 v58, 2, v58")
    A(f"ds_write_b64 v14, v[14:15] offset:{L_FL}\nds_write_b32 v58, v14 offset:{L_FL+16}\nds_write_b32 v58, v8 offset:{L_FL+32}")
    if 'q' in abl:
        A(f"s_waitcnt lgkmcnt(0)\ns_add_u32 s{sT}, s{sT}, {hex(TINC)}\ns_barrier\ns_branch L_q2")
    if xd:
        A(f"s_cmp_lg_u32 s2, 0\ns_cbranch_scc1 L_nz\nv_mul_u32_u24 v9, 4352, v1\ns_mov_b32 s36, {WS_XC}\nbuffer_store_dword v14, v9, s[{rWS}:{rWS+3}], s36 offen sc1\nL_nz:")
    if touch:
        A("s_mov_b64 exec, 1")
        for t in range(1, 4):
            A(f"s_mov_b32 s{rS}, s{80+2*t}\ns_mov_b32 s{rS+1}, s{81+2*t}\nbuffer_load_dword v{8+t}, v3, s[{rS}:{rS+3}], s21 offen {pol}")
        A(f"buffer_load_dword v12, v3, s[{rWO}:{rWO+3}], s42 offen {pol}")
        A("s_mov_b64 exec, -1")
    if codepf:
        A("s_getpc_b64 s[8:9]\nL_pc:")
        A(f"s_sub_u32 s8, s8, L_pc-{KN}\ns_subb_u32 s9, s9, 0")
        A("v_lshlrev_b32 v6, 7, v1\nv_min_u32 v54, CODE_LAST, v6\nglobal_load_dword v13, v54, s[8:9]")
        A("v_add_u32 v6, 8192, v6\nv_min_u32 v55, CODE_LAST, v6\nglobal_load_dword v13, v55, s[8:9]")
    A(f"s_lshl_b32 s36, s3, 13\ns_add_u32 s36, s36, {WS_QP}")
    A("s_and_b32 s37, s4, 15\ns_lshl_b32 s37, s37, 9\ns_add_u32 s37, s37, s36\ns_lshl_b32 s39, s5, 16\ns_add_u32 s37, s37, s39")
    A(f"s_lshl_b32 s36, s62, 13\ns_add_u32 s36, s36, {WS_QP}\ns_add_u32 s38, s36, 4096")
    A("v_lshlrev_b32 v6, 3, v1\nv_lshlrev_b32 v7, 2, v1")
    A(f"s_waitcnt lgkmcnt(0)\ns_add_u32 s{sT}, s{sT}, {hex(TINC)}")
    A(f"s_getreg_b32 s12, hwreg(HW_REG_XCC_ID, 0, 4)\ns_xor_b32 s12, s12, s{sT}")
    A(f"v_mov_b32 v17, s{sT}\nv_mov_b32 v19, s12\ns_mov_b32 s13, {1 if local else 2}\ns_mov_b32 s14, {KQ}")
    st(1)
    A("s_barrier")
    A("s_mov_b32 exec_hi, 0")
    for w in range(4): A(f"ds_read_b64 v[{20+2*w}:{21+2*w}], v6 offset:{w*256}")
    A("s_waitcnt lgkmcnt(0)")
    A("v_add_f32 v20, v20, v22\nv_add_f32 v21, v21, v23\nv_add_f32 v24, v24, v26\nv_add_f32 v25, v25, v27")
    A("v_add_f32 v16, v20, v24\nv_add_f32 v18, v21, v25")
    A(f"buffer_store_dwordx4 v[16:19], v3, s[{rWS}:{rWS+3}], s37 offen {'' if (local and not qsc) else 'sc1'}")
    A("s_mov_b32 exec_hi, -1\ns_mov_b32 s40, 0")
    st(2)
    if gdelay: A("s_barrier")
    A(f"L_qb:\ns_mov_b32 s39, {TMO}")
    A("L_qg:")
    for e in range(8):
        A(f"buffer_load_dwordx4 v[{20+4*e}:{23+4*e}], v3, s[{rWS}:{rWS+3}], s{36 if e < 4 else 38} offen offset:{(e%4)*1024} sc1")
    A("s_sub_u32 s39, s39, 1\ns_cmp_eq_u32 s39, 0\ns_cbranch_scc1 L_qgd")
    A("s_waitcnt vmcnt(0)")
    for e in range(8): A(f"v_xor_b32 v{21+4*e}, v{21+4*e}, v17\nv_xor_b32 v{23+4*e}, v{23+4*e}, v19")
    A("v_or3_b32 v12, v21, v25, v29\nv_or3_b32 v13, v23, v27, v31\nv_or3_b32 v12, v12, v33, v37\nv_or3_b32 v13, v13, v35, v39")
    A("v_or3_b32 v12, v12, v41, v45\nv_or3_b32 v13, v13, v43, v47\nv_or_b32 v13, v13, v51\nv_lshrrev_b32 v15, 4, v13\nv_or3_b32 v12, v12, v49, v15")
    A("v_cmp_ne_u32 vcc, 0, v12\ns_and_b64 exec, exec, vcc")
    A("s_cbranch_execz L_qgd")
    if local and not qsc:
        A("s_sub_u32 s14, s14, 1\ns_cmp_lg_u32 s14, 0\ns_cbranch_scc1 L_qs\ns_mov_b64 s[60:61], exec\ns_mov_b32 exec_lo, -1\ns_mov_b32 exec_hi, 0")
        A(f"buffer_store_dwordx4 v[16:19], v3, s[{rWS}:{rWS+3}], s37 offen sc1\ns_mov_b64 exec, s[60:61]\nL_qs:")
    A(f"s_sleep {slpg}\ns_branch L_qg")
    A("L_qgd:\ns_mov_b64 exec, -1\ns_waitcnt vmcnt(0)")
    if local:
        A("v_cmp_ne_u32 vcc, 0, v13\ns_cbranch_vccz L_ql\ns_mov_b32 s13, 2")
        if not qsc: A(f"s_mov_b32 exec_hi, 0\nbuffer_store_dwordx4 v[16:19], v3, s[{rWS}:{rWS+3}], s37 offen sc1\ns_mov_b32 exec_hi, -1")
        A("L_ql:")
    for e in range(4):
        A(f"v_add_f32 v{20+4*e}, v{20+4*e}, v{36+4*e}\nv_add_f32 v{22+4*e}, v{22+4*e}, v{38+4*e}")
        A(f"v_cvt_pk_bf16_f32 v{8+e}, v{20+4*e}, v{22+4*e}")
    for e in range(4): A(f"ds_write_b32 v7, v{8+e} offset:{L_Q+e*256}")
    A("s_waitcnt lgkmcnt(0)")
    A("s_cmp_lg_u32 s40, 0\ns_cbranch_scc1 L_q2")
    st(3)
    A("s_barrier")
    A("s_mov_b32 s40, 1\ns_add_u32 s36, s36, 65536\ns_add_u32 s38, s38, 65536\nv_add_u32 v7, 1024, v7\ns_branch L_qb")
    A(f"L_q2:\ns_mov_b32 s10, s13\nv_mov_b32 v15, s13\nds_write_b32 v14, v15 offset:{L_FL}")
    A(f"s_mul_i32 s28, s62, {4*32*768}\ns_mul_i32 s29, s63, 768\ns_add_u32 s28, s28, s29\ns_add_u32 s28, s28, {WS_PART}")
    for h in range(1, 4): A(f"s_add_u32 s{28+h}, s28, {h*32*768}")
    st(4)
    if warm: A("s_mov_b64 exec, 0\ns_branch L_w0")
    else: A("s_branch L_h2nd")
    mark0 = len(A.L)
    A("L_h2nd:\ns_mov_b64 exec, -1")
    A(f"s_lshl_b32 s36, s3, 10\ns_add_u32 s36, s36, {WS_FB}\ns_lshl_b32 s37, s4, 4\ns_add_u32 s37, s37, s36")
    A(f"v_and_b32 v57, 31, v1\nv_lshlrev_b32 v57, 4, v57\ns_mov_b32 s39, {TMO}\ns_mov_b32 s40, 4")
    A(f"v_mov_b32 v31, s{sT}\nv_min_u32 v62, 47, v1\nv_lshlrev_b32 v62, 4, v62\nv_mov_b32 v61, 0")
    A(f"s_mov_b32 s44, {hex(f2u(up))}\ns_mov_b32 s45, {hex(f2u(dn))}")
    if xd: A(f"s_add_u32 s12, s22, {WS_XC}\ns_addc_u32 s13, s23, 0\ns_mov_b32 s14, {x0}\ns_mov_b32 s15, 0\ns_mov_b32 s16, {hex(f2u(xg))}\ns_mov_b32 s17, {hex(f2u(xg*xb))}")
    A("L_fb:")
    A(f"ds_read_b128 v[80:83], v14 offset:{L_FL+16}\nds_read_b32 v88, v58 offset:{L_FL+16}\nds_read_b32 v89, v14 offset:{L_FL+4}\ns_waitcnt lgkmcnt(0)")
    A("v_min3_u32 v90, v80, v81, v82\nv_min_u32 v90, v90, v83\nv_readfirstlane_b32 s38, v89\nv_readfirstlane_b32 s41, v90")
    if fb:
        for c in range(4): A(f"v_add_u32 v{80+c}, s{sT}, v{80+c}")
        A(f"s_mov_b64 exec, 1\nbuffer_store_dwordx4 v[80:83], v14, s[{rWS}:{rWS+3}], s37 offen\ns_mov_b64 exec, -1")
        A(f"buffer_load_dwordx4 v[84:87], v57, s[{rWS}:{rWS+3}], s36 offen sc1")
        if xd: A(f"buffer_load_dwordx2 v[94:95], v14, s[{rWS}:{rWS+3}], s36 offen offset:512 sc1")
    else:
        A("s_sleep 32")
    if codepf and cref is not None:
        A(f"s_xor_b32 s6, s39, s4\ns_and_b32 s6, s6, {cref}\ns_cbranch_scc1 L_nc\nglobal_load_dword v13, v54, s[8:9] sc1\nglobal_load_dword v13, v55, s[8:9] sc1\nL_nc:")
    A("s_cmp_lt_u32 s38, 4\ns_cbranch_scc1 L_fb1\ns_cmp_eq_u32 s40, 0\ns_cbranch_scc1 L_fb1")
    st(5)
    A("L_ah:")
    combine(61, 62, L_MLA, L_OA)
    for r in range(12): A(f"v_mov_b32 v{64+r}, v{68+r}")
    for r in range(4): A(f"v_mov_b32 v{76+r}, v{28+r}")
    A(f"v_add_u32 v61, 32, v61\nv_add_u32 v62, 768, v62\ns_sub_u32 s40, s40, 1\ns_cmp_lg_u32 s40, 0\ns_cbranch_scc1 L_ah")
    if local and (amid or prefill):
        A("s_cmp_lg_u32 s10, 1\ns_cbranch_scc1 L_fb1\ns_mov_b32 exec_hi, 0xffff")
        A(f"v_not_b32 v19, v31\nv_add_u32 v20, {32*32*768}, v3")
        for h in range(4):
            if amid: A(f"buffer_store_dwordx4 v[{64+4*h}:{67+4*h}], v3, s[{rWS}:{rWS+3}], s{28+h} offen")
            elif prefill: A(f"buffer_store_dwordx4 v[16:19], v3, s[{rWS}:{rWS+3}], s{28+h} offen")
            if prefill: A(f"buffer_store_dwordx4 v[16:19], v20, s[{rWS}:{rWS+3}], s{28+h} offen")
        A("s_mov_b32 exec_hi, -1\ns_waitcnt vmcnt(0)")
    A("L_fb1:")
    A(f"s_cmp_ge_u32 s41, {fbend}\ns_cbranch_scc1 L_fbd\ns_sub_u32 s39, s39, 1\ns_cmp_eq_u32 s39, 0\ns_cbranch_scc1 L_fbd")
    if fb:
        A("s_waitcnt vmcnt(0)")
        for c in range(4): A(f"v_subrev_u32 v{84+c}, s{sT}, v{84+c}")
        A("v_max3_u32 v90, v84, v85, v86\nv_max_u32 v90, v90, v87\nv_add3_u32 v91, v84, v85, v86\nv_add_u32 v91, v91, v87")
        A("v_cmp_ge_u32 vcc, 0x400, v90\nv_cvt_f32_u32 v91, v91\nv_mov_b32 v92, 4.0\nv_cndmask_b32 v91, 0, v91, vcc\nv_cndmask_b32 v92, 0, v92, vcc")
        for ro in (1, 2, 4, 8):
            A("s_nop 0")
            for r in (91, 92): A(f"v_add_f32_dpp v{r}, v{r}, v{r} row_ror:{ro} {DPPF}")
        for r in (91, 92): A(f"v_mov_b32 v93, v{r}\ns_nop 1\nv_permlane16_swap_b32 v93, v{r}\nv_add_f32 v{r}, v{r}, v93")
        A("v_rcp_f32 v92, v92\nv_cvt_f32_u32 v88, v88\nv_mul_f32 v91, v91, v92")
        if xd:
            A("s_cmp_ge_u32 s2, 8\ns_cbranch_scc1 L_nx\nv_cvt_u32_f32 v93, v91\ns_mov_b32 s18, 1\nv_readfirstlane_b32 s19, v93\ns_nop 3\ns_cmp_lt_u32 s19, s14\ns_cbranch_scc1 L_nx")
            A(f"s_atomic_add s18, s[12:13], s15 glc\ns_add_u32 s15, s15, 4352\ns_add_u32 s14, s14, {xd}\nv_mov_b32 v93, s17")
            A(f"s_waitcnt lgkmcnt(0)\ns_min_u32 s18, s18, 7\nv_cvt_f32_u32 v94, s18\nv_fma_f32 v94, v94, s16, v93\nv_mov_b32 v95, s{sT}")
            A(f"s_mov_b64 exec, 1\nbuffer_store_dwordx2 v[94:95], v14, s[{rWS}:{rWS+3}], s36 offen offset:512\ns_mov_b64 exec, -1")
            A("L_nx:")
            A(f"v_cmp_eq_u32 vcc, s{sT}, v95\nv_sub_f32 v91, v91, v88\ns_nop 0\nv_cndmask_b32 v93, 0, v94, vcc\nv_add_f32 v91, v91, v93")
        else:
            A("v_sub_f32 v91, v91, v88")
        A("v_mov_b32 v92, 1\nv_cmp_lt_f32 vcc, s44, v91\nv_cmp_gt_f32 s[56:57], s45, v91\ns_nop 0\nv_cndmask_b32 v92, v92, 2, vcc\nv_cndmask_b32 v92, v92, 0, s[56:57]")
        A(f"ds_write_b32 v58, v92 offset:{L_FL+32}")
    A("s_branch L_fb")
    A("L_fbd:")
    A("s_mov_b32 exec_hi, 0xffff")
    if local and alast:
        A("s_cmp_lg_u32 s10, 1\ns_cbranch_scc1 L_al")
        if alast == 2:
            A(f"v_not_b32 v19, v31\nv_add_u32 v20, {32*32*768}, v3")
            for h in range(4): A(f"buffer_store_dwordx4 v[16:19], v20, s[{rWS}:{rWS+3}], s{28+h} offen")
        for h in range(4): A(f"buffer_store_dwordx4 v[{64+4*h}:{67+4*h}], v3, s[{rWS}:{rWS+3}], s{28+h} offen")
        if alast == 2: A("s_waitcnt vmcnt(4)")
        A("L_al:")
    A("s_barrier")
    if local:
        A("s_cmp_lg_u32 s10, 1\ns_cbranch_scc1 L_as")
        if not amid and not alast:
            for h in range(4): A(f"buffer_store_dwordx4 v[{64+4*h}:{67+4*h}], v3, s[{rWS}:{rWS+3}], s{28+h} offen")
        A("s_branch L_ad\nL_as:")
    for h in range(4): A(f"buffer_store_dwordx4 v[{64+4*h}:{67+4*h}], v3, s[{rWS}:{rWS+3}], s{28+h} offen sc1")
    A("L_ad:")
    if pbar: A("s_barrier")
    if stamp:
        A("s_mov_b32 exec_hi, -1")
        st(6); st(7); A("s_branch L_stamp")
    else:
        A("s_endpgm")

    moved = A.L[mark0:]; del A.L[mark0:]
    moved1 = A.L[markh:]; del A.L[markh:]
    A("L_stream:")
    VOFF = 6; KP = 7; VP = 59
    k0, k1 = pos["k0"], pos["k1"]
    A("v_and_b32 v2, 3, v1\nv_lshlrev_b32 v2, 4, v2\nv_lshrrev_b32 v52, 4, v1\nv_lshl_add_u32 v2, v52, 6, v2")
    A(f"v_bfe_u32 v52, v1, 2, 1\nv_lshl_add_u32 v{KP}, v52, {k0}, v2\nv_bfe_u32 v52, v1, 3, 1\nv_lshl_add_u32 v{KP}, v52, {k1}, v{KP}")
    A(f"v_mov_b32 v{VOFF}, v{KP}\ns_mov_b32 s43, s21\ns_mov_b32 s46, 0")
    A("v_bfe_u32 v52, v1, 2, 2\nv_lshl_add_u32 v2, v52, 8, v2")
    def toff(j): return sum(1 << pos[f"t{i}"] for i in range(5) if (j >> i) & 1)
    cur = [None]
    def ld(j):
        o = toff(j); imm = sum(1 << pos[f"t{i}"] for i in range(5) if (j >> i) & 1 and pos[f"t{i}"] < 12 and not (xored >> i) & 1); hi_ = o - imm
        if hi_ == 0: so = "s43"
        else:
            so = "s40"
            if cur[0] != hi_: A(f"s_xor_b32 s40, s43, {hex(hi_)}"); cur[0] = hi_
        A(f"buffer_load_dwordx4 a[{4*j}:{4*j+3}], v{VOFF}, s[{rS}:{rS+3}], {so} offen offset:{imm} {pol}")
        if j == R - 1: cur[0] = None
    def nextblk():
        A("s_add_u32 s46, s46, 1")
        bits(43, 46, [(0, pos["t5"]), (1, pos["t6"])])
        A("s_xor_b32 s43, s43, s21")
    nxt = [0]
    def ring_next():
        ld(nxt[0]); nxt[0] += 1
    while nxt[0] < b0 - 8: ring_next()
    for c in range(8): A(f"v_mov_b32 v{ACC+c}, 0")
    for i in range(8 if 'q' not in abl else 0):
        A(f"s_waitcnt vmcnt({nxt[0]+7-i})")
        want = n0last if i == 7 else n0
        while nxt[0] + 7 - i < want: ring_next()
        if i % 2 == 0: A(f"v_lshlrev_b32 v52, 16, v{XR+i//2}")
        else: A(f"v_and_b32 v52, 0xffff0000, v{XR+i//2}")
        for c in range(8):
            r = WR + 4*i + c//2
            if c % 2 == 0: A(f"v_lshlrev_b32 v53, 16, v{r}")
            else: A(f"v_and_b32 v53, 0xffff0000, v{r}")
            A(f"v_fmac_f32 v{ACC+c}, v52, v53")
    A("v_and_b32 v54, 7, v1\nv_lshlrev_b32 v54, 5, v54")
    for c in range(4): A(f"v_permlane32_swap_b32 v{ACC+c}, v{ACC+4+c}")
    for c in range(4): A(f"v_add_f32 v{ACC+c}, v{ACC+c}, v{ACC+4+c}")
    A("v_lshrrev_b32 v55, 4, v1\nv_lshl_add_u32 v54, v55, 3, v54")
    for c in range(2): A(f"v_permlane16_swap_b32 v{ACC+c}, v{ACC+2+c}")
    for c in range(2): A(f"v_add_f32 v{ACC+c}, v{ACC+c}, v{ACC+2+c}")
    A("s_lshl_b32 s36, s20, 8\nv_add_u32 v54, s36, v54")
    for c in range(2): A(f"v_add_f32_dpp v{ACC+2+c}, v{ACC+c}, v{ACC+c} row_ror:8 {DPPF}")
    A(f"ds_write_b64 v54, v[{ACC+2}:{ACC+3}]\ns_waitcnt lgkmcnt(0)")
    if 'q' not in abl: A("s_barrier")
    A(f"s_add_u32 s{sT}, s{sT}, {hex(TINC)}")
    st(1)
    M0, M1 = 8, 9; MC, LS, TMP, X, Y = 10, 11, 12, 13, 14
    O = 16; QOP = 24; PK = 28; PA = 32; DD = 40; C = 64
    PG, MD, FA = 36, 37, 38
    OW, MLW = 60, 61
    sC = 45; sM = 44
    init = []
    init += ["v_and_b32 v58, 3, v1", f"v_mov_b32 v{M0}, 0", f"v_mov_b32 v{M1}, 0", f"v_mov_b32 v{X}, 0xffff", f"v_mov_b32 v{Y}, 0xffff0000"]
    for e in range(4): init += [f"v_cmp_eq_u32 s[{90+2*e}:{91+2*e}], {e}, v58"]
    for e, (dst, src) in enumerate(((M0, X), (M0, Y), (M1, X), (M1, Y))):
        init += [f"v_cndmask_b32 v{dst}, v{dst}, v{src}, s[{90+2*e}:{91+2*e}]"]
    init += [f"s_mov_b32 s{sC}, {hex(f2u(CSCALE))}\ns_mov_b32 s{sM}, 1\ns_mov_b64 vcc, 0"]
    init += [f"v_lshrrev_b32 v{OW}, 2, v1\nv_mul_u32_u24 v{OW}, 192, v{OW}\nv_lshl_add_u32 v{OW}, v58, 4, v{OW}\ns_mul_i32 s36, s20, 3072\ns_add_u32 s36, s36, {L_OA}\nv_add_u32 v{OW}, s36, v{OW}"]
    init += [f"v_bfe_u32 v{MLW}, v1, 2, 2\nv_lshlrev_b32 v{MLW}, 5, v{MLW}\ns_lshl_b32 s36, s20, 3\nv_add_u32 v{MLW}, s36, v{MLW}"]
    init += ["v_mov_b32 v62, 0\nv_mov_b32 v63, 1\ns_mov_b32 s41, 0"]
    init += [f"v_and_b32 v{VP}, 15, v1\nv_lshlrev_b32 v{VP}, 4, v{VP}\nv_bfe_u32 v57, v1, 4, 1\nv_lshl_add_u32 v{VP}, v57, {k0}, v{VP}\nv_lshrrev_b32 v57, 5, v1\nv_lshl_add_u32 v{VP}, v57, {k1}, v{VP}"]
    init += [f"v_mov_b32 v{PG}, 32\ns_lshl_b32 s36, s20, 2\nv_mov_b32 v{FA}, s36"]
    while nxt[0] < R:
        nn = n0last if nxt[0] >= R - (n0last - n0) - 1 else n0
        A(f"s_waitcnt vmcnt({nn-1})"); ring_next()
        if gdelay and nxt[0] == gdelay and 'q' not in abl: A("s_barrier")
        if init: A(init.pop(0))
    while init: A(init.pop(0))
    st(2)
    A(f"s_barrier\nds_read_b128 v[{QOP}:{QOP+3}], v2 offset:{L_Q}\nds_write_b32 v{FA}, v{PG} offset:{L_FL+16}")
    def paced(tag, j):
        if fb:
            if j % brk == 0: A(f"s_cmp_lg_u32 s{sM}, 0\ns_cbranch_scc1 L_{tag}a{j}\ns_waitcnt vmcnt({lo-1})\nL_{tag}a{j}:")
            A(f"s_cbranch_vccnz L_{tag}b{j}\ns_waitcnt vmcnt({n-1})\nL_{tag}b{j}:\ns_waitcnt vmcnt({hi-1})")
        else:
            A(f"s_waitcnt vmcnt({n-1})")
        ld(j)
        if j % per == per - 1: A(f"v_add_u32 v{PG}, {per}, v{PG}\nds_write_b32 v{FA}, v{PG} offset:{L_FL+16}")
        if fb and j % rd == 0: A(f"ds_read_b32 v{MD}, v{FA} offset:{L_FL+32}")
        if fb and j % rd == 1: A(f"s_waitcnt lgkmcnt(0)\nv_cmp_eq_u32 vcc, 2, v{MD}\nv_readfirstlane_b32 s{sM}, v{MD}")
    def xy(j):
        d = DD + 4 * (j & 3); s = j & 3
        A(f"v_add_f32_dpp v{X}, v{d+(s^1)}, v{d+s} quad_perm:[{s^1},{s^1},{s^1},{s^1}] {DPPF}")
        A(f"v_add_f32_dpp v{Y}, v{d+(s^3)}, v{d+(s^2)} quad_perm:[{s^3},{s^3},{s^3},{s^3}] {DPPF}")
    def zc(j):
        s = j & 3; c = C + 24 + ((j >> 2) & 7)
        A(f"v_add_f32_dpp v{X}, v{Y}, v{X} quad_perm:[{s^2},{s^2},{s^2},{s^2}] {DPPF}")
        A(f"v_cndmask_b32 v{c}, v{c}, v{X}, s[{90+2*s}:{91+2*s}]")
    def kbody():
        fill = {j: [] for j in range(R)}
        for i in range(8):
            steps = [max(0, 4*i-1), max(0, 4*i), 4*i+1]
            for k in range(3): fill[steps[k]].append(f"v_mov_b32 v{C+8*k+i}, v{C+8*k+8+i}")
        for j in range(R):
            d = DD + 4 * (j & 3)
            A(f"v_mfma_f32_16x16x32_bf16 v[{d}:{d+3}], a[{4*j}:{4*j+3}], v[{QOP}:{QOP+3}], 0")
            xy(j - 2)
            paced("k", j)
            zc(j - 2)
            for x in fill[j]: A(x)
    def pexp(i, k):
        if k == 0: A(f"v_fma_f32 v{TMP}, v{C+i}, s{sC}, -v{MC}\nv_exp_f32 v{TMP}, v{TMP}\nv_mov_b32 v{C+i}, v{C+8+i}")
        if k == 1: A(f"v_cvt_pk_bf16_f32 v{PK+(i&1)}, v{TMP}, v{TMP}\nv_mov_b32 v{C+8+i}, v{C+16+i}")
        if k == 2:
            A(f"v_add_f32 v{LS}, v{LS}, v{TMP}\nv_mov_b32 v{C+16+i}, v{C+24+i}")
            if i == 0: A(f"v_mov_b32 v{C+24}, 0xff800000")
    def pexp_last(i, k):
        if k == 0: A(f"v_fma_f32 v{TMP}, v{C+i}, s{sC}, -v{MC}\nv_exp_f32 v{TMP}, v{TMP}")
        if k == 1: A(f"v_cvt_pk_bf16_f32 v{PK+(i&1)}, v{TMP}, v{TMP}\nv_add_f32 v{LS}, v{LS}, v{TMP}")
    def aop(j):
        s = j & 3; p = PK + ((j >> 2) & 1); a = PA + 2 * (j & 1)
        A(f"v_and_b32_dpp v{a}, v{p}, v{M0} quad_perm:[{s},{s},{s},{s}] {DPPF}")
        A(f"v_and_b32_dpp v{a+1}, v{p}, v{M1} quad_perm:[{s},{s},{s},{s}] {DPPF}")
    def vbody(wl, pre=None, last=False):
        for j in range(R):
            a = PA + 2 * (j & 1)
            if j % wk == (0 if last else 1): stub()
            if pre: pre(j)
            A(f"v_mfma_f32_16x16x16_bf16 v[{O}:{O+3}], v[{a}:{a+1}], a[{4*j}:{4*j+1}], v[{O}:{O+3}]")
            A(f"v_mfma_f32_16x16x16_bf16 v[{O+4}:{O+7}], v[{a}:{a+1}], a[{4*j+2}:{4*j+3}], v[{O+4}:{O+7}]")
            if not (last and j == R - 1): aop(j + 1)
            wl(j)
            if not last: pexp(((j >> 2) + 1) & 7, j & 3)
            elif j < R - 4: pexp_last((j >> 2) + 1, j & 3)
    def lred():
        A(f"v_add_f32_dpp v{LS}, v{LS}, v{LS} quad_perm:[1,0,3,2] {DPPF}\ns_nop 1\nv_add_f32_dpp v{LS}, v{LS}, v{LS} quad_perm:[2,3,0,1] {DPPF}")
        A(f"v_mov_b32 v{TMP}, v{LS}\ns_nop 1\nv_permlane16_swap_b32 v{TMP}, v{LS}\nv_add_f32 v{LS}, v{LS}, v{TMP}")
        A(f"v_mov_b32 v{TMP}, v{LS}\ns_nop 1\nv_permlane32_swap_b32 v{TMP}, v{LS}\nv_add_f32 v{LS}, v{LS}, v{TMP}")
    def owrite():
        A(f"ds_write2_b32 v{OW}, v{O}, v{O+1} offset0:0 offset1:1\nds_write2_b32 v{OW}, v{O+2}, v{O+3} offset0:2 offset1:16")
        A(f"ds_write2_b32 v{OW}, v{O+4}, v{O+5} offset0:17 offset1:18\nds_write2_b32 v{OW}, v{O+6}, v{O+7} offset0:32 offset1:33")
    A("s_waitcnt lgkmcnt(0)")
    st(3)
    A("s_branch L_branch")
    A.raw(".p2align 12")
    A.L.extend(moved1)
    A.raw(".p2align 6")
    A("L_branch:\ns_mov_b32 s37, 4")
    A(".p2align 3\nL_kloop:")
    nextblk()
    A("s_cmp_lg_u32 s37, 1\ns_cbranch_scc1 L_k1")
    A(f"s_cmp_eq_u32 s41, 0\ns_cselect_b32 s{rS}, s82, s86\ns_cselect_b32 s{rS+1}, s83, s87\nv_mov_b32 v{VOFF}, v{VP}")
    A("L_k1:")
    kbody()
    A("s_sub_u32 s37, s37, 1\ns_cmp_lg_u32 s37, 0\ns_cbranch_scc1 L_kloop")
    stub()
    xy(30)
    for r in range(8): A(f"v_mov_b32 v{O+r}, 0")
    zc(30); xy(31)
    A(f"v_max3_f32 v{MC}, v{C}, v{C+1}, v{C+2}\nv_max3_f32 v{MC}, v{MC}, v{C+3}, v{C+4}")
    zc(31); stub()
    for i in range(5, 31, 2): A(f"v_max3_f32 v{MC}, v{MC}, v{C+i}, v{C+i+1}")
    A(f"v_max_f32 v{MC}, v{MC}, v{C+31}\nv_mov_b32 v{LS}, 0\ns_nop 0")
    A(f"v_max_f32_dpp v{MC}, v{MC}, v{MC} quad_perm:[1,0,3,2] {DPPF}\ns_nop 1\nv_max_f32_dpp v{MC}, v{MC}, v{MC} quad_perm:[2,3,0,1] {DPPF}")
    A(f"v_mov_b32 v{TMP}, v{MC}\ns_nop 1\nv_permlane16_swap_b32 v{TMP}, v{MC}\nv_max_f32 v{MC}, v{MC}, v{TMP}")
    A(f"v_mov_b32 v{TMP}, v{MC}\ns_nop 1\nv_permlane32_swap_b32 v{TMP}, v{MC}\nv_max_f32 v{MC}, v{MC}, v{TMP}")
    stub()
    A(f"v_mul_f32 v{MC}, s{sC}, v{MC}")
    for k in range(3): pexp(0, k)
    aop(0)
    A("s_cmp_eq_u32 s41, 0\ns_cselect_b32 s37, 4, 3\ns_cselect_b32 s38, 1, 0")
    A("s_branch L_vloop")
    A.raw(".p2align 12")
    A("L_vloop:")
    stub()
    nextblk()
    A("s_cmp_lg_u32 s37, s38\ns_cbranch_scc1 L_v1")
    A(f"s_mov_b32 s{rS}, s84\ns_mov_b32 s{rS+1}, s85\nv_mov_b32 v{VOFF}, v{KP}")
    A("L_v1:")
    vbody(lambda j: paced("v", j))
    A("s_sub_u32 s37, s37, 1\ns_cmp_lg_u32 s37, 0\ns_cbranch_scc1 L_vloop")
    A("s_cmp_lg_u32 s41, 0\ns_cbranch_scc1 L_last")
    A(f"L_qbw:\nds_read_b32 v{X}, v62 offset:{L_FL}\nds_read_b128 v[{QOP}:{QOP+3}], v2 offset:{L_QB}")
    A(f"s_waitcnt lgkmcnt(0)\nv_readfirstlane_b32 s10, v{X}\nv_cmp_eq_u32 vcc, 0, v{X}\ns_cbranch_vccnz L_qbw")
    stub()
    lred()
    owrite()
    A(f"ds_write_b64 v{MLW}, v[{MC}:{MC+1}] offset:{L_MLA}")
    A(f"s_mov_b64 exec, 1\ns_waitcnt lgkmcnt(0)\nds_add_u32 v62, v63 offset:{L_FL+4}\ns_mov_b64 exec, -1")
    A(f"v_subrev_u32 v{OW}, {L_OA}, v{OW}\ns_mov_b32 s41, 1\ns_branch L_branch")
    A.raw(".p2align 6")
    A.L.extend(moved)
    A.raw(".p2align 12")
    A("L_last:")
    st(4)
    WOA = 128
    if asym: A("s_mov_b32 s11, s42\ns_cmp_eq_u32 s5, 0\ns_cselect_b32 s42, 0x1000000, s42")
    nlast = hi if fb else n
    tail = ["v_lshrrev_b32 v58, 4, v1\nv_lshlrev_b32 v58, 11, v58", "v_and_b32 v59, 15, v1\nv_lshl_add_u32 v58, v59, 4, v58"]
    tail += ["v_lshrrev_b32 v56, 2, v1\nv_mul_u32_u24 v56, 768, v56", "v_and_b32 v59, 3, v1\nv_lshl_add_u32 v56, v59, 4, v56"]
    tail += ["s_lshl_b32 s37, s5, 5\ns_lshl_b32 s38, s3, 2", "s_add_u32 s37, s37, s38\ns_bfe_u32 s38, s2, 0x20005", f"s_add_u32 s60, s37, s38\ns_mul_i32 s37, s60, {32*768}"]
    tail += [f"s_mul_i32 s38, s20, 192\ns_add_u32 s37, s37, s38", f"s_add_u32 s37, s37, {WS_PART}\ns_add_u32 s38, s37, {16*768}"]
    tail += ["s_lshl_b32 s36, s62, 2\ns_add_u32 s36, s36, s20", f"s_lshl_b32 s36, s36, 5\ns_add_u32 s36, s36, s63", f"s_mul_i32 s36, s36, 768\ns_add_u32 s36, s36, {WS_PART + 32*32*768}"]
    tail += ["s_lshl_b32 s39, s20, 5\nv_mov_b32 v62, s39", "s_mul_i32 s39, s20, 768\nv_min_u32 v63, 47, v1", "v_lshlrev_b32 v63, 4, v63\nv_add_u32 v63, s39, v63"]
    tail += [f"v_mov_b32 v31, s{sT}\ns_mov_b32 s39, {TMO}"]
    tail += [f"v_mul_u32_u24 v57, 768, v1\ns_and_b32 s61, s60, 0x3c", f"s_mul_i32 s61, s61, {32*768}\ns_add_u32 s61, s61, {WS_PART}"]
    wo_issued = [0]
    assert wostep >= 2
    def wl_drain(j):
        if wostep <= j < wostep + 8 and ('w' in abl or wolate): A("s_nop 1")
        elif wostep <= j < wostep + 8:
            i = j - wostep; p, k = divmod(i, 2)
            if k == 0 and p > 0: A("s_add_u32 s42, s42, 8192")
            else: A("s_nop 0")
            A(f"buffer_load_dwordx4 a[{WOA+4*i}:{WOA+4*i+3}], v58, s[{rWO}:{rWO+3}], s42 offen offset:{k*1024} {pol}")
            wo_issued[0] += 1
        elif tail: A(tail.pop(0))
        elif j == R - 5: lred(); A(f"ds_write_b64 v{MLW}, v[{MC}:{MC+1}] offset:{L_ML}")
        elif j < R - 1: A("s_nop 1")
    def gather():
        for hf in range(2):
            for u in range(3): A(f"buffer_load_dwordx4 v[{72+12*hf+4*u}:{75+12*hf+4*u}], v56, s[{rWS}:{rWS+3}], s{37+hf} offen offset:{64*u} sc1")
    def pre_drain(j):
        if j == pregather:
            assert not tail
            gather(); wo_issued[0] += 6
        need = R - 1 - j
        if need < nlast: A(f"s_waitcnt vmcnt({need + wo_issued[0]})")
        if j == R - 5: assert not tail
    assert wostep + 8 <= R - 5
    vbody(wl_drain, pre_drain, last=True)
    if tst: st = lambda i: None
    st(5); ts(1)
    if 't' in abl: st(6); A("s_branch L_fin")
    def wo_all():
        for i in range(8):
            p, k = divmod(i, 2)
            if k == 0 and p > 0: A("s_add_u32 s42, s42, 8192")
            A(f"buffer_load_dwordx4 a[{WOA+4*i}:{WOA+4*i+3}], v58, s[{rWO}:{rWO+3}], s42 offen offset:{k*1024} {pol}")
    if wolate == 1: wo_all()
    elif pregather == 32: gather(); A("s_nop 0")
    else: stub(); A("s_nop 5")
    owrite()
    A("s_waitcnt lgkmcnt(0)\ns_barrier")
    combine(62, 63, L_ML, L_O, stub)
    A("s_mov_b32 exec_hi, 0xffff")
    if local:
        A(f"s_cmp_lg_u32 s10, 1\ns_cbranch_scc1 L_bs\nbuffer_store_dwordx4 v[28:31], v3, s[{rWS}:{rWS+3}], s36 offen\ns_branch L_bd\nL_bs:")
    A(f"buffer_store_dwordx4 v[28:31], v3, s[{rWS}:{rWS+3}], s36 offen sc1")
    A("L_bd:")
    if pbar: A("s_barrier")
    if wolate == 2: A("s_mov_b32 exec_hi, -1"); wo_all()
    if 'u' in abl: st(6); A("s_branch L_fin")
    ts(2)
    if h1wait: A("s_waitcnt vmcnt(0)")
    ts(3)
    if probe is not None:
        A("s_mov_b32 exec_hi, 0")
        A("L_pr:")
        A(f"buffer_load_dword v32, v57, s[{rWS}:{rWS+3}], s61 offen offset:12 sc1")
        A("s_sub_u32 s39, s39, 1\ns_cmp_eq_u32 s39, 0\ns_cbranch_scc1 L_prd")
        A("s_waitcnt vmcnt(0)\nv_cmp_ne_u32 vcc, v32, v31\ns_and_b64 exec, exec, vcc\ns_bcnt1_i32_b64 s40, exec")
        A(f"s_cmp_le_u32 s40, {probe}\ns_cbranch_scc1 L_prd\ns_sleep {slpp}\ns_branch L_pr")
        A(f"L_prd:\ns_mov_b32 s39, {TMO}")
    A("s_mov_b64 exec, -1")
    if pregather is not None: A("s_waitcnt vmcnt(1)\ns_branch L_h1c")
    if asym:
        A("s_cmp_lg_u32 s5, 0\ns_cbranch_scc1 L_h1")
        gather(); A("s_mov_b32 s42, s11"); wo_all()
        A("s_waitcnt vmcnt(8)\ns_branch L_h1c")
    stub()
    A("L_h1:")
    for hf in range(2):
        for u in range(3): A(f"buffer_load_dwordx4 v[{72+12*hf+4*u}:{75+12*hf+4*u}], v56, s[{rWS}:{rWS+3}], s{37+hf} offen offset:{64*u} sc1")
    A("s_sub_u32 s39, s39, 1\ns_cmp_eq_u32 s39, 0\ns_cbranch_scc1 L_h1d")
    A("s_waitcnt vmcnt(0)")
    A("L_h1c:")
    A("v_max3_u32 v32, v75, v79, v83\nv_min3_u32 v33, v75, v79, v83\nv_max3_u32 v32, v32, v87, v91\nv_min3_u32 v33, v33, v87, v91\nv_max3_u32 v32, v32, v95, v31\nv_min3_u32 v33, v33, v95, v31")
    A("v_cmp_ne_u32 vcc, v32, v33\ns_and_b64 exec, exec, vcc")
    A("s_cbranch_execnz L_h1")
    A("L_h1d:\ns_mov_b64 exec, -1")
    st(6); ts(4)
    if tst: A("s_mov_b32 s53, s52\ns_mov_b32 s54, s52")
    OE = [72, 73, 74, 76, 77, 78, 80, 81]; LSE = 82
    A(f"v_max_f32 v32, v{LSE}, v{LSE+12}\ns_nop 0"); stub()
    A(f"v_max_f32_dpp v32, v32, v32 row_ror:4 {DPPF}\ns_nop 1\nv_max_f32_dpp v32, v32, v32 row_ror:8 {DPPF}")
    A("v_mov_b32 v33, v32\ns_nop 1\nv_permlane16_swap_b32 v33, v32\nv_max_f32 v32, v32, v33")
    A("v_mov_b32 v33, v32\ns_nop 1\nv_permlane32_swap_b32 v33, v32\nv_max_f32 v32, v32, v33")
    A(f"v_sub_f32 v34, v{LSE}, v32\nv_sub_f32 v35, v{LSE+12}, v32\nv_exp_f32 v34, v34\nv_exp_f32 v35, v35")
    for e in range(8): A(f"v_mul_f32 v{OE[e]}, v{OE[e]}, v34")
    A("v_add_f32 v32, v34, v35\nv_add_f32 v33, v34, v35"); stub()
    for e in range(8): A(f"v_fmac_f32 v{OE[e]}, v{OE[e]+12}, v35")
    A("v_permlane32_swap_b32 v33, v32")
    for c in range(4): A(f"v_permlane32_swap_b32 v{OE[c]}, v{OE[4+c]}")
    A("v_add_f32 v32, v32, v33")
    for c in range(4): A(f"v_add_f32 v{OE[c]}, v{OE[c]}, v{OE[4+c]}")
    A("v_mov_b32 v33, v32"); stub()
    for c in range(2): A(f"v_permlane16_swap_b32 v{OE[c]}, v{OE[2+c]}")
    A("v_permlane16_swap_b32 v33, v32")
    for c in range(2): A(f"v_add_f32 v{OE[c]}, v{OE[c]}, v{OE[2+c]}")
    A("v_add_f32 v32, v32, v33")
    for ro in (4, 8):
        for r in (72, 73, 32): A(f"v_add_f32_dpp v{r}, v{r}, v{r} row_ror:{ro} {DPPF}")
    A("v_rcp_f32 v32, v32"); stub(); A("v_mul_f32 v64, v72, v32\nv_mul_f32 v65, v73, v32")
    A("v_cvt_pk_bf16_f32 v64, v64, v64\nv_cvt_pk_bf16_f32 v65, v65, v65")
    A("v_lshlrev_b32 v60, 5, v1\ns_lshl_b32 s36, s20, 9\nv_add_u32 v60, s36, v60")
    PB = 40
    def aop2(i):
        p, k = divmod(i, 2)
        A(f"v_and_b32_dpp v{PB+2*i}, v{64+k}, v{M0} quad_perm:[{p},{p},{p},{p}] {DPPF}")
        A(f"v_and_b32_dpp v{PB+2*i+1}, v{64+k}, v{M1} quad_perm:[{p},{p},{p},{p}] {DPPF}")
    aop2(0); aop2(1)
    A("s_waitcnt vmcnt(0)")
    for i in range(8):
        c0 = "0" if i == 0 else "v[24:27]"; c1 = "0" if i == 0 else "v[20:23]"
        A(f"v_mfma_f32_16x16x16_bf16 v[24:27], v[{PB+2*i}:{PB+2*i+1}], a[{WOA+4*i}:{WOA+4*i+1}], {c0}")
        A(f"v_mfma_f32_16x16x16_bf16 v[20:23], v[{PB+2*i}:{PB+2*i+1}], a[{WOA+4*i+2}:{WOA+4*i+3}], {c1}")
        if i + 2 < 8: aop2(i + 2)
        if i in (2, 6): stub()
    A(f"s_lshl_b32 s36, s60, 12\ns_and_b32 s37, s4, 3\ns_lshl_b32 s37, s37, 10\ns_add_u32 s36, s36, s37\ns_add_u32 s36, s36, {WS_OUTP}")
    A("v_lshlrev_b32 v61, 3, v1\nv_mov_b32 v29, v31")
    A("v_lshrrev_b32 v62, 1, v1\nv_lshlrev_b32 v62, 12, v62\nv_and_b32 v63, 1, v1\nv_lshl_add_u32 v62, v63, 4, v62")
    A("s_mov_b64 exec, 0xffff")
    A(f"ds_write_b128 v60, v[24:27] offset:{L_OP}\nds_write_b128 v60, v[20:23] offset:{L_OP+16}")
    A("s_mov_b64 exec, -1")
    stub()
    A("s_lshl_b32 s38, s3, 4\ns_and_b32 s37, s4, 15\ns_add_u32 s38, s38, s37")
    A(f"s_lshl_b32 s37, s5, 17\ns_lshl_b32 s39, s38, 5\ns_add_u32 s37, s37, s39\ns_add_u32 s37, s37, {WS_OUTP}")
    A("s_waitcnt lgkmcnt(0)\ns_barrier")
    if dirty:
        A(f"s_cmp_eq_u32 s20, 0\ns_cbranch_scc1 L_nd\ns_lshl_b32 s36, s2, 2\ns_add_u32 s36, s36, s20\ns_mul_i32 s36, s36, {dirty*1024}\ns_add_u32 s36, s36, 0x1000000\ns_mov_b32 s37, {dirty}")
        A(f"L_dl:\nbuffer_store_dwordx4 v[28:31], v3, s[{rWS}:{rWS+3}], s36 offen\ns_add_u32 s36, s36, 1024\ns_sub_u32 s37, s37, 1\ns_cmp_lg_u32 s37, 0\ns_cbranch_scc1 L_dl\nL_nd:")
    if wb:
        A(f"s_cmp_lg_u32 s20, 1\ns_cbranch_scc1 L_nwb\ns_cmp_ge_u32 s2, {wb}\ns_cbranch_scc1 L_nwb\nbuffer_wbl2 sc1\nL_nwb:")
    A("s_cmp_lg_u32 s20, 0\ns_cbranch_scc1 L_fin")
    for w in range(4): A(f"ds_read_b64 v[{32+2*w}:{33+2*w}], v61 offset:{L_OP+w*512}")
    A(f"v_lshrrev_b32 v60, 5, v1\nv_lshlrev_b32 v60, 1, v60\nv_lshl_add_u32 v60, v63, 2, v60")
    A(f"s_lshl_b32 s38, s38, 3\ns_lshl_b32 s39, s5, 10\ns_add_u32 s38, s38, s39\ns_mov_b32 s39, {TMO}")
    A("s_waitcnt lgkmcnt(0)")
    A("v_add_f32 v32, v32, v34\nv_add_f32 v33, v33, v35\nv_add_f32 v36, v36, v38\nv_add_f32 v37, v37, v39")
    A("v_add_f32 v28, v32, v36\nv_add_f32 v30, v33, v37")
    A(f"buffer_store_dwordx4 v[28:31], v3, s[{rWS}:{rWS+3}], s36 offen sc1")
    ts(5); stub()
    if h2wait: A("s_waitcnt vmcnt(0)")
    ts(6)
    A("L_h2:")
    A(f"buffer_load_dwordx4 v[20:23], v62, s[{rWS}:{rWS+3}], s37 offen sc1")
    A("s_sub_u32 s39, s39, 1\ns_cmp_eq_u32 s39, 0\ns_cbranch_scc1 L_h2d")
    A("s_waitcnt vmcnt(0)")
    A("v_xor_b32 v32, v21, v31\nv_xor_b32 v33, v23, v31\nv_or_b32 v32, v32, v33")
    A("v_cmp_ne_u32 vcc, 0, v32\ns_and_b64 exec, exec, vcc")
    A("s_cbranch_execnz L_h2")
    A("L_h2d:\ns_mov_b64 exec, -1\ns_waitcnt vmcnt(0)")
    A("v_permlane32_swap_b32 v20, v22\nv_add_f32 v20, v20, v22")
    A("v_mov_b32 v21, v20\ns_nop 1\nv_permlane16_swap_b32 v21, v20\nv_add_f32 v20, v20, v21")
    for ro in (8, 4, 2): A(f"s_nop 1\nv_add_f32_dpp v20, v20, v20 row_ror:{ro} {DPPF}")
    stub()
    A("v_cvt_pk_bf16_f32 v20, v20, v20")
    A("s_mov_b32 exec_lo, 3\ns_mov_b32 exec_hi, 3")
    A(f"buffer_store_short v20, v60, s[{rOUT}:{rOUT+3}], s38 offen {outsc}")
    A("s_cmp_lg_u32 s2, 0\ns_cbranch_scc1 L_fin")
    A(f"s_mov_b64 exec, 1\ns_mov_b32 s36, {WS_EPOCH}\nbuffer_store_dword v31, v3, s[{rWS}:{rWS+3}], s36 offen sc1")
    A("L_fin:")
    if stamp:
        A("s_mov_b64 exec, -1")
        st_(7)
        A("L_stamp:")
        if diag:
            idx, base, mult, wg = diag
            A(f"s_cmp_lg_u32 s2, {wg}\ns_cbranch_scc1 L_end\ns_cmp_lg_u32 s20, 0\ns_cbranch_scc1 L_end")
            A(f"s_sub_u32 s36, s{48+idx}, s48\ns_sub_i32 s36, s36, {int(base*100)}\ns_max_i32 s36, s36, 0\ns_min_i32 s36, s36, 5000\ns_mul_i32 s36, s36, {mult}")
            A("L_spin:\ns_memrealtime s[88:89]\ns_waitcnt lgkmcnt(0)\ns_sub_u32 s37, s88, s55\ns_cmp_lt_u32 s37, s36\ns_cbranch_scc1 L_spin\ns_endpgm")
        if hwid: A("s_getreg_b32 s49, hwreg(HW_REG_HW_ID)\ns_getreg_b32 s50, hwreg(HW_REG_XCC_ID)")
        for i in range(8): A(f"v_mov_b32 v{8+i}, s{48+i}")
        A(f"s_mul_i32 s61, s2, 5\ns_add_u32 s61, s61, s20\ns_lshl_b32 s61, s61, 5\nv_mov_b32 v2, s61\ns_mov_b64 exec, 1")
        A(f"buffer_store_dwordx4 v[8:11], v2, s[{rWS}:{rWS+3}], 0 offen\nbuffer_store_dwordx4 v[12:15], v2, s[{rWS}:{rWS+3}], 0 offen offset:16")
    A("L_end:\ns_endpgm")
    A.raw(f".set CODE_LAST, L_end-{KN}")
    if warm: A.raw(f".set L_w{nst[0]}, L_h2nd")
    A.raw(kd(KN, 96 + 160, 96, ns=100))
    open(name + ".s", "w").write(A.text())
    return build(name + ".s")
def plan(fn, L):
    open(fn, "w").write("\n".join(L) + "\n")
    print(json.dumps(['work/' + x.split()[1] for x in L] + ['work/' + fn, 'work/runner']))
```

```python
from gen_v8 import *
kw = dict(stamp=True, tst=True)
L = [gen("f_a_st", fbend=500, **kw), gen("f_s19_st", asym=True, fbend=500, **kw), gen("f_s10_st", asym=True, fbend=500, wostep=10, **kw), gen("f_s2_st", asym=True, fbend=500, wostep=2, **kw),
     gen("f_s10p_st", asym=True, fbend=500, wostep=10, per=2, rd=4, **kw), gen("f_s10f_st", asym=True, fbend=492, wostep=10, **kw), gen("f_now_st", abl='w', fbend=500, **kw),
     gen("f_a", fbend=500), gen("f_s10", asym=True, fbend=500, wostep=10), gen("f_s19", asym=True, fbend=500)]
plan("plan_e25.txt", L)
```
